```python
import torch

def _softmax(x, axis=-1):
    return torch.softmax(x, dim=axis)
def _gelu(x):
    return torch.nn.functional.gelu(x, approximate="tanh")
def _silu(x):
    return torch.nn.functional.silu(x)
def _sigmoid(x):
    return torch.sigmoid(x)
def _layernorm(x, axis=-1, eps=1e-5):
    m = x.mean(dim=axis, keepdim=True)
    v = x.var(dim=axis, keepdim=True, unbiased=False)
    return (x - m) / torch.sqrt(v + eps)
def _scatter_add(tgt, idx, src, axis=0):
    return tgt.clone().index_add_(axis, idx, src)
def _segment_sum(src, seg, n):
    out = torch.zeros((n,) + src.shape[1:], dtype=src.dtype)
    return out.index_add_(0, seg, src)
def _pad(x, pw):
    flat = tuple(v for pair in reversed(pw) for v in pair)
    return torch.nn.functional.pad(x, flat)

kernel_name = 'recurrent_scan__linear_kernel_hedgehog__dense_activation_silu__prompt'

def setup_inputs():

    _w = (lambda a: (lambda t: t.to(torch.bfloat16) if t.is_floating_point() else t)(torch.as_tensor(a)))
    def _A_setup():
        B, S, D, H = 1, 2048, 640, 32
        Dh = D // H
        return {
            "x": _w((lambda *s: torch.randn(*s, dtype=torch.bfloat16) * 0.05)(B, S, D)),
            "wqkv": _w((lambda *s: torch.randn(*s, dtype=torch.bfloat16) * 0.4)(D, 3 * D)),
            "w_phi": _w((lambda *s: torch.randn(*s, dtype=torch.bfloat16) * 0.4)(H, Dh, Dh) * (Dh ** -0.5)),
            "wo": _w((lambda *s: torch.randn(*s, dtype=torch.bfloat16) * 0.2)(D, D)),
        }
    _A_in = _A_setup()

    def _B_setup():
        B, S, D, F = 1, 2048, 640, 1728
        return {
            "x": _w((lambda *s: torch.randn(*s, dtype=torch.bfloat16) * 0.05)(B, S, D)),
            "w1": _w((lambda *s: torch.randn(*s, dtype=torch.bfloat16) * 0.4)(D, F) * (D ** -0.5)),
            "w2": _w((lambda *s: torch.randn(*s, dtype=torch.bfloat16) * 0.1)(F, D) * (F ** -0.5)),
        }
    _B_in = _B_setup()

    return {
        "A_x": _A_in["x"],
        "A_wqkv": _A_in["wqkv"],
        "A_w_phi": _A_in["w_phi"],
        "A_wo": _A_in["wo"],
        "B_x": _B_in["x"],
        "B_w1": _B_in["w1"],
        "B_w2": _B_in["w2"],
    }

def reference(A_x, A_wqkv, A_w_phi, A_wo, B_x, B_w1, B_w2):
    def _A_ref(x, wqkv, w_phi, wo):
        B, S, D = x.shape
        H = 32; Dh = D // H
        qkv = (lambda x, *d: x.permute(*d))((x @ wqkv).reshape(B, S, 3, H, Dh), 2, 0, 3, 1, 4)
        q, k, v = qkv[0], qkv[1], qkv[2]
        pq = torch.einsum("bhsd,hdf->bhsf", q, w_phi)
        pk = torch.einsum("bhsd,hdf->bhsf", k, w_phi)
        phi_q = torch.concatenate([_softmax(pq, axis=-1), _softmax(-pq, axis=-1)], axis=-1)
        phi_k = torch.concatenate([_softmax(pk, axis=-1), _softmax(-pk, axis=-1)], axis=-1)
        kv = torch.einsum("bhsf,bhsd->bhfd", phi_k, v)
        z  = torch.einsum("bhsf->bhf", phi_k)
        num = torch.einsum("bhqf,bhfd->bhqd", phi_q, kv)
        den = torch.einsum("bhqf,bhf->bhq", phi_q, z)[..., None] + 1e-6
        o = num / den
        return (lambda x, *d: x.permute(*d))(o, 0, 2, 1, 3).reshape(B, S, D) @ wo

    def _B_ref(x, w1, w2):
        h = torch.einsum("bsd,df->bsf", x, w1)
        h = _silu(h)
        out = torch.einsum("bsf,fd->bsd", h, w2)
        return out

    x = A_x
    xn = _layernorm(x, axis=-1)
    s = _A_ref(xn, A_wqkv, A_w_phi, A_wo)
    g = _silu(_B_ref(xn, B_w1, B_w2))
    return x + s * g
```

```python
import re, subprocess, os

class Ins:
    __slots__ = ("text", "kind", "is_label", "is_dir", "nops_before")
    def __init__(self, text):
        self.text = text
        t = text.strip()
        self.is_label = t.endswith(":")
        self.is_dir = t.startswith(".") or t.startswith(";") or t == ""
        self.nops_before = 0

_reg_re = re.compile(r"\b([vas])(\d+)\b|\b([vas])\[(\d+):(\d+)\]|\b(vcc|exec|m0|scc)\b")

def regs_of(op):
    out = []
    for m in _reg_re.finditer(op):
        if m.group(1): out.append((m.group(1), int(m.group(2))))
        elif m.group(3):
            for i in range(int(m.group(4)), int(m.group(5)) + 1): out.append((m.group(3), i))
        else: out.append((m.group(6), 0))
    return out

TRANS = ("v_exp_f32", "v_log_f32", "v_rcp_f32", "v_rsq_f32", "v_sqrt_f32", "v_sin_f32", "v_cos_f32")

def split_ops(s):
    out = []; d = 0; cur = ""
    for ch in s:
        if ch == "[": d += 1
        if ch == "]": d -= 1
        if ch == "," and d == 0: out.append(cur.strip()); cur = ""
        else: cur += ch
    if cur.strip(): out.append(cur.strip())
    return out

def analyze(text):
    t = text.split(";")[0].strip()
    parts = t.split(None, 1)
    mn = parts[0]
    rest = parts[1] if len(parts) > 1 else ""
    ops = split_ops(rest)
    mods = ""
    if ops:
        lp = ops[-1].split(None, 1)
        if len(lp) > 1 and not lp[0].startswith("abs("):
            ops[-1] = lp[0]; mods = lp[1]
    base = mn.replace("_e32", "").replace("_e64", "").replace("_dpp", "").replace("_sdwa", "")
    d = dict(mn=base, defs=[], uses=[], kind="other", passes=0, mods=mods, ops=ops)
    R = lambda i: regs_of(ops[i]) if i < len(ops) else []
    if base.startswith("v_mfma"):
        d["kind"] = "mfma"; d["passes"] = 8 if "32x32x16" in base else 4
        d["defs"] = R(0); d["A"] = R(1); d["B"] = R(2); d["C"] = R(3); d["uses"] = R(1) + R(2) + R(3)
    elif base.startswith("v_cmp"):
        d["kind"] = "valu"; d["defs"] = R(0); d["uses"] = R(1) + R(2)
        if base.startswith("v_cmpx"): d["defs"] += [("exec", 0)]
    elif base in ("v_readfirstlane_b32", "v_readlane_b32"):
        d["kind"] = "valu"; d["defs"] = R(0); d["uses"] = R(1) + R(2); d["readlane"] = True
    elif base.startswith("v_"):
        d["kind"] = "valu"
        d["defs"] = R(0); d["uses"] = []
        st = 1
        if base in ("v_add_co_u32", "v_sub_co_u32", "v_addc_co_u32", "v_subb_co_u32", "v_subrev_co_u32"):
            d["defs"] += R(1); st = 2
        for i in range(st, len(ops)): d["uses"] += R(i)
        if base.startswith("v_fmac") or base.startswith("v_dot2c") or base.startswith("v_pk_fmac"): d["uses"] += R(0)
        if base.startswith("v_permlane"): d["defs"] += R(1); d["uses"] += R(0); d["permlane"] = True
        if base in TRANS: d["trans"] = True
        if base.startswith("v_dot"): d["dl"] = True
        if any(k in mods for k in ("quad_perm", "row_", "wave_", "row_bcast")) or "_dpp" in mn: d["dpp"] = True
    elif base.startswith("ds_"):
        d["kind"] = "ds"
        if base.startswith("ds_read") or base.startswith("ds_bpermute") or base.startswith("ds_permute") or base.startswith("ds_swizzle"):
            d["defs"] = R(0); d["uses"] = sum((R(i) for i in range(1, len(ops))), [])
        else:
            d["uses"] = sum((R(i) for i in range(len(ops))), [])
    elif base.startswith("buffer_") or base.startswith("global_"):
        d["kind"] = "vmem"
        islds = re.search(r"\blds\b", mods) is not None
        if "load" in base and not islds:
            d["defs"] = R(0); d["uses"] = sum((R(i) for i in range(1, len(ops))), [])
        else:
            d["uses"] = sum((R(i) for i in range(len(ops))), [])
            if islds: d["uses"] += [("m0", 0)]; d["ldsdma"] = True
            if ("store" in base or "atomic" in base):
                di = 0 if base.startswith("buffer_") else 1
                d["sdata"] = R(di)
                if "atomic" in base and "sc0" in mods: d["defs"] = R(di)
    elif base.startswith("s_"):
        d["kind"] = "salu"
        if base.startswith("s_cmp") or base.startswith("s_cbranch") or base in ("s_branch", "s_waitcnt", "s_barrier", "s_nop", "s_endpgm", "s_sleep", "s_setprio"):
            d["uses"] = sum((R(i) for i in range(len(ops))), [])
        elif base.startswith("s_load") or base.startswith("s_memtime"):
            d["kind"] = "smem"; d["defs"] = R(0); d["uses"] = sum((R(i) for i in range(1, len(ops))), [])
        else:
            d["defs"] = R(0); d["uses"] = sum((R(i) for i in range(1, len(ops))), [])
            if "saveexec" in base: d["defs"] += [("exec", 0)]
    return d

def states_of(d):
    if d["mn"] == "s_nop": return int(d["ops"][0], 0) + 1
    return 1

def required_gap(p, c):
    need = 0
    pd = set(p["defs"]); cu = set(c["uses"]); cd = set(c["defs"])
    vreg = lambda s: {r for r in s if r[0] in "va"}
    sreg = lambda s: {r for r in s if r[0] in ("s", "vcc")}
    if p["kind"] == "valu":
        pv = vreg(pd); ps = sreg(pd)
        if c["kind"] == "mfma" and pv & cu: need = max(need, 2)
        if c["kind"] == "valu":
            if c.get("dpp") and pv & cu: need = max(need, 2)
            if c.get("permlane") and pv & cu: need = max(need, 2)
            if c.get("readlane") and pv & cu: need = max(need, 1)
            if p.get("trans") and not c.get("trans") and pv & (cu | cd): need = max(need, 1)
            if p.get("dl") and not (c.get("dl") and c["mn"] == p["mn"]) and pv & (cu | cd): need = max(need, 3)
            if ps & cu: need = max(need, 4 if c.get("readlane") else 2)
        if c["kind"] == "vmem" and ps & cu: need = max(need, 5)
        if p.get("dl") and c["kind"] in ("vmem", "ds", "mfma") and pv & cu: need = max(need, 3)
        if p.get("trans") and c["kind"] in ("vmem", "ds") and pv & cu: need = max(need, 1)
        if ("exec", 0) in pd:
            if c["kind"] == "mfma": need = max(need, 4)
            if c.get("dpp"): need = max(need, 5)
            if c.get("readlane") or c.get("permlane"): need = max(need, 4)
    if p["kind"] == "salu":
        if ("m0", 0) in pd and c.get("ldsdma"): need = max(need, 1)
    if p["kind"] == "mfma":
        ps_ = p["passes"]; pv = vreg(pd)
        big = {4: 8, 8: 12}[ps_]; ovl = {4: 6, 8: 10}[ps_]
        if c["kind"] == "mfma":
            if pv & (set(c["A"]) | set(c["B"])): need = max(need, big)
            cc = set(c["C"])
            if pv & cc and not (cc == pv and c["passes"] == ps_): need = max(need, ovl)
            if pv & cd and not (cc == pv and c["passes"] == ps_): need = max(need, ovl)
        elif c["kind"] in ("valu", "vmem", "ds"):
            if pv & (cu | cd): need = max(need, big)
        if c["kind"] == "valu" and set(p["C"]) & cd: need = max(need, {4: 3, 8: 7}[ps_])
    if p["kind"] == "vmem" and p.get("sdata") and len(p["sdata"]) >= 3:
        if set(p["sdata"]) & cd: need = max(need, 2 if c["kind"] == "valu" else 1)
    return need

class Asm:
    def __init__(self):
        self.ins = []
        self.vm = []
        self.lg = []
    def raw(self, text):
        for l in text.split("\n"): self.ins.append(Ins(l))
    def __call__(self, text): self.raw(text)
    def label(self, name): self.ins.append(Ins(name + ":"))
    def vmem(self, text, tag=None, optional=False):
        self.raw(text); self.vm.append((tag, optional))
    def lds(self, text, tag=None):
        self.raw(text); self.lg.append(tag)
    def wait_vm(self, tag=None):
        if tag is None:
            if self.vm: self.raw("s_waitcnt vmcnt(0)")
            self.vm = []; return
        idx = max((i for i, (t, o) in enumerate(self.vm) if t == tag), default=-1)
        if idx < 0: return
        n = sum(1 for (t, o) in self.vm[idx + 1:] if not o)
        n = min(n, 63)
        self.raw(f"s_waitcnt vmcnt({n})")
        self.vm = self.vm[idx + 1:]
    def wait_lg(self, tag=None):
        if tag is None:
            if self.lg: self.raw("s_waitcnt lgkmcnt(0)")
            self.lg = []; return
        idx = max((i for i, t in enumerate(self.lg) if t == tag), default=-1)
        if idx < 0: return
        n = min(len(self.lg) - idx - 1, 15)
        self.raw(f"s_waitcnt lgkmcnt({n})")
        self.lg = self.lg[idx + 1:]
    def barrier(self): self.raw("s_barrier")
    def fix_hazards(self):
        out = []; hists = [[]]
        pend = {}
        for I in self.ins:
            if I.is_dir: out.append(I); continue
            if I.is_label:
                name = I.text.strip()[:-1]
                for h in pend.pop(name, []): hists.append(h)
                out.append(I); continue
            d = analyze(I.text)
            need = 0
            for hist in hists:
                dist = 0
                for (p, st) in reversed(hist):
                    g = required_gap(p, d)
                    if g > dist: need = max(need, g - dist)
                    dist += st
                    if dist >= 20: break
            while need > 0:
                k = min(need, 16)
                n = Ins(f"s_nop {k-1}"); out.append(n)
                for hist in hists: hist.append((analyze(n.text), k))
                need -= k
            out.append(I)
            for hist in hists: hist.append((d, states_of(d)))
            if d["mn"].startswith("s_cbranch") or d["mn"] == "s_branch":
                tgt = d["ops"][0]
                pend.setdefault(tgt, []).extend([list(h[-30:]) for h in hists])
                if d["mn"] == "s_branch": hists = [[]]
            hists = [h[-30:] for h in hists]
            if len(hists) > 1:
                keep = [hists[0]]
                for h in hists[1:]:
                    if len(h) >= 22 and len(hists[0]) >= 22 and all(x[0] is y[0] for x, y in zip(h[-22:], hists[0][-22:])): continue
                    keep.append(h)
                hists = keep
        self.ins = out
    def text(self): return "\n".join(i.text for i in self.ins) + "\n"

def assemble(path_s, path_o):
    r = subprocess.run(["clang", "-x", "assembler", "-target", "amdgcn-amd-amdhsa", "-mcpu=gfx950", "-c", path_s, "-o", path_o], capture_output=True, text=True)
    if r.returncode: print(r.stderr[:4000]); raise SystemExit(1)
```

```python
import sys
from asmlib import *

NAME = "recurrent_scan__linear_kernel_hedgehog__dense_activation_silu__prompt"
K1 = "hh_k1_kernel"; K2 = "hh_k2_kernel"
WS_KV = 0
WS_AF = 0x100000
WS_WF = 0xC00000
WS_SZ = 0x1000000
OOB = 0x7f000000
SHUF = 98304; STAGE = 81920; PHI = 147456; OA = 0
TRB = 49152
LOG2E = 0x3fb8aa3b
def f2u(x):
    import struct
    return struct.unpack("<I", struct.pack("<f", x))[0]

def srd(a, d, base, size):
    a(f"s_mov_b32 s{d}, s{base}")
    a(f"s_and_b32 s{d+1}, s{base+1}, 0xffff")
    a(f"s_mov_b32 s{d+2}, {size}")
    a(f"s_mov_b32 s{d+3}, 0x20000")

def vdivmod(a, q, r, src, c, maxv):
    M = -(-65536 // c)
    assert all((p * M) >> 16 == p // c for p in range(maxv + 1)), (c, maxv)
    a(f"v_mul_u32_u24 v{q}, {M}, v{src}")
    a(f"v_lshrrev_b32 v{q}, 16, v{q}")
    a(f"v_mul_u32_u24 v{r}, {c}, v{q}")
    a(f"v_sub_u32 v{r}, v{src}, v{r}")

SX, SQ, SP, S1, ST, SW, SD, SC = 24, 28, 32, 36, 40, 44, 48, 52
sW, sMB, sHG, sJ = 56, 57, 58, 59
sT0, sT1, sT2, sT3 = 60, 61, 62, 63
sMASK = 64
sONES = 65
sC = 66
sNC = 68
sXO = 70
sW20 = 74; sW12 = 75
sR0 = 76; sR1 = 77
sAFO = 78
sTJ = 79
sONE2 = 80
sW1T = 82
sTMP = 84

vLANE = 1
vTR = {320: (2, 3), 192: (4, 5)}
vDMA0 = 6
vDMA1 = 11
vSWe, vSWo = 14, 15
vSR = 16
vRS = 20
vNM = 24
vT = 28
ACC0 = 32
XR = 96
def xr(c, rg): return XR + 16 * c + 4 * rg
XF = 0
AFR = 160; NS = 8

def tr_read(a, stride, off, dst, tag):
    lo, hi = vTR[stride]
    if off >= TRB: v, o = hi, off - TRB
    else: v, o = lo, off
    assert o < 65536
    a.lds(f"ds_read_b64_tr_b16 {dst}, v{v} offset:{o}", tag)

def common_prologue(a, typ):
    pass

def gen_k1():
    a = Asm()
    a(f".globl {K1}\n.p2align 8\n.type {K1},@function\n{K1}:")
    a("s_cmp_ge_u32 s2, 256\ns_cbranch_scc1 L1_end")
    a("s_load_dwordx4 s[4:7], s[0:1], 0")
    a("s_load_dwordx4 s[8:11], s[0:1], 16")
    a("s_load_dwordx4 s[12:15], s[0:1], 40")
    a("s_load_dwordx4 s[16:19], s[0:1], 56")
    a("s_load_dwordx2 s[20:21], s[0:1], 72")
    a("s_getpc_b64 s[22:23]")
    a.label("L1_pc")
    a(f"v_and_b32 v{vLANE}, 63, v0")
    a("v_lshrrev_b32 v2, 6, v0")
    a("s_and_b32 s60, s2, 7")
    a(f"v_readfirstlane_b32 s{sW}, v2")
    a("s_lshr_b32 s61, s2, 3")
    a("s_lshr_b32 s62, s61, 4")
    a(f"s_lshl_b32 s{sMB}, s60, 1")
    a(f"s_add_u32 s{sMB}, s{sMB}, s62")
    a(f"s_and_b32 s{sJ}, s61, 15")
    a(f"s_and_b32 s{sHG}, s{sJ}, 7")
    a(f"s_mov_b32 s{SC}, s22\ns_and_b32 s{SC+1}, s23, 0xffff\ns_mov_b32 s{SC+2}, L_code_end-L1_pc\ns_mov_b32 s{SC+3}, 0x20000")
    a("v_lshlrev_b32 v2, 4, v0")
    a("s_lshl_b32 s63, s61, 12")
    a.vmem(f"buffer_load_dwordx4 a[252:255], v2, s[{SC}:{SC+3}], s63 offen", "code")
    a(f"s_mov_b32 s{sMASK}, 0xffff0000\ns_mov_b32 s{sONES}, 0x3f803f80")
    a(f"s_mov_b32 s{sC}, {LOG2E:#x}\ns_mov_b32 s{sC+1}, {LOG2E:#x}")
    a(f"s_mov_b32 s{sNC}, {LOG2E|0x80000000:#x}\ns_mov_b32 s{sNC+1}, {LOG2E|0x80000000:#x}")
    a(f"s_mov_b32 s{sONE2}, 1.0\ns_mov_b32 s{sONE2+1}, 1.0")
    a(f"s_mul_i32 s{sW20}, s{sW}, 5120\ns_mul_i32 s{sW12}, s{sW}, 3072")
    a(f"s_lshl_b32 s60, s{sMB}, 2\ns_add_u32 s60, s60, s{sW}\ns_mul_i32 s{sXO}, s60, 40960")
    for rg in range(1, 4): a(f"s_add_u32 s{sXO+rg}, s{sXO}, {rg*10240}")
    a(f"s_lshr_b32 s60, s{sW}, 1\ns_lshl_b32 s61, s{sMB}, 1\ns_add_u32 s60, s60, s61\ns_mul_i32 s{sAFO}, s60, {74*4096}\ns_add_u32 s{sAFO}, s{sAFO}, {WS_AF}")
    a(f"s_lshl_b32 s{sTJ}, s2, 2\ns_add_u32 s{sTJ}, s{sTJ}, s{sW}")
    a(f"v_lshrrev_b32 v3, 3, v{vLANE}\nv_and_b32 v4, 7, v{vLANE}\nv_mul_u32_u24 v2, 1280, v3\nv_lshl_add_u32 v2, v4, 4, v2")
    a("s_waitcnt lgkmcnt(0)")
    srd(a, SX, 4, 2621440); srd(a, SQ, 6, 2457600); srd(a, SP, 8, 25600); srd(a, S1, 12, 2211840)
    srd(a, SW, 20, WS_SZ); srd(a, SD, 18, 256)
    for c in range(10):
        for rg in range(4):
            r = xr(c, rg)
            a.vmem(f"buffer_load_dwordx4 v[{r}:{r+3}], v2, s[{SX}:{SX+3}], s{sXO+rg} offen offset:{c*128}", ("x", c))
    a(f"v_lshrrev_b32 v5, 1, v3\nv_xor_b32 v5, v4, v5\nv_lshlrev_b32 v5, 4, v5\nv_lshl_add_u32 v{vSWe}, v3, 7, v5")
    a(f"s_lshl_b32 s60, s{sW}, 13\ns_add_u32 s60, s60, {SHUF}")
    a(f"v_add_u32 v{vSWe}, s60, v{vSWe}\nv_xor_b32 v{vSWo}, 64, v{vSWe}")
    a(f"v_and_b32 v3, 31, v{vLANE}\nv_lshrrev_b32 v4, 5, v{vLANE}\nv_bfe_u32 v5, v3, 1, 3\nv_xor_b32 v5, v4, v5\nv_lshlrev_b32 v5, 4, v5\nv_lshl_add_u32 v{vSR}, v3, 7, v5\nv_add_u32 v{vSR}, s60, v{vSR}")
    for s in range(1, 4): a(f"v_xor_b32 v{vSR+s}, {s*32}, v{vSR}")
    a(f"v_bfe_u32 v28, v{vLANE}, 4, 1\nv_lshrrev_b32 v29, 5, v{vLANE}\nv_bfe_u32 v30, v{vLANE}, 2, 2\nv_lshl_add_u32 v29, v29, 3, v30")
    a(f"v_and_b32 v30, 1, v{vLANE}\nv_lshl_add_u32 v28, v30, 1, v28\nv_lshlrev_b32 v28, 4, v28\nv_bfe_u32 v30, v{vLANE}, 1, 1\nv_lshl_add_u32 v28, v30, 3, v28")
    for st in (320, 192):
        lo, hi = vTR[st]
        a(f"v_mul_u32_u24 v{lo}, {st}, v29\nv_add_u32 v{lo}, v{lo}, v28\nv_add_u32 v{hi}, {TRB}, v{lo}")
    a(f"s_cmp_ge_u32 s{sJ}, 8\ns_cbranch_scc1 L1_typeB")
    import copy
    st_vm = list(a.vm); st_lg = list(a.lg)
    gen_type(a, "A")
    a("s_branch L1_end")
    a.label("L1_typeB")
    a.vm = list(st_vm); a.lg = list(st_lg)
    gen_type(a, "B")
    a.label("L1_end")
    a("s_endpgm")
    return a

def dma_voffsets(a, kind):
    NP = 20 if kind in ("kv", "w4") else 12
    base = vDMA0 if NP == 20 else vDMA1
    rs = 3840 if kind in ("kv", "q") else 3456
    for i in range(NP // 4):
        d = base + i
        a(f"v_add_u32 v28, {64*i}, v{vLANE}")
        vdivmod(a, 29, 30, 28, NP, 64 * i + 63)
        a(f"v_mul_u32_u24 v{d}, {rs}, v29")
        if kind in ("kv", "q"):
            a("v_lshrrev_b32 v28, 2, v30\nv_and_b32 v31, 1, v30\nv_lshl_add_u32 v28, v28, 1, v31\nv_bfe_u32 v31, v30, 1, 1")
            if kind == "kv":
                a("v_cmp_lt_u32 vcc, 4, v28\nv_mov_b32 v29, 1280\nv_mov_b32 v30, 2480\nv_cndmask_b32 v29, v29, v30, vcc")
                a(f"v_add_u32 v{d}, v{d}, v29")
            else:
                a("v_min_u32 v28, 4, v28")
            a(f"v_lshl_add_u32 v{d}, v28, 4, v{d}\nv_mul_u32_u24 v31, 80, v31\nv_add_u32 v{d}, v{d}, v31")
            a(f"s_mul_i32 s60, s{sHG}, 160\nv_add_u32 v{d}, s60, v{d}")
        else:
            if kind == "w4": a("v_min_u32 v30, 15, v30")
            a(f"v_lshl_add_u32 v{d}, v30, 4, v{d}")
            a(f"s_lshl_b32 s60, s{sW1T}, 6\nv_add_u32 v{d}, s60, v{d}")

class Region:
    def __init__(self, kind, off, sreg):
        self.kind = kind; self.NP = 20 if kind in ("kv", "w4") else 12
        self.stride = self.NP * 16; self.off = off; self.sreg = sreg
        self.srd = SQ if kind in ("kv", "q") else S1
        self.rs = 3840 if kind in ("kv", "q") else 3456
        self.vb = vDMA0 if self.NP == 20 else vDMA1
        self.sw = sW20 if self.NP == 20 else sW12
        self.nt = {"kv": 5, "q": 3, "w3": 3, "w4": 4}[kind]

def dma_chunk(a, regions, slotbase, tag):
    for R in regions:
        for i in range(R.NP // 4):
            if R.kind == "w4" and False: pass
            a(f"s_add_u32 m0, s{R.sw}, {slotbase + R.off + i*1024}")
            a.vmem(f"buffer_load_dwordx4 v{R.vb+i}, s[{R.srd}:{R.srd+3}], s{R.sreg} offen lds", tag)
        a(f"s_add_u32 s{R.sreg}, s{R.sreg}, {64*R.rs}")

def norm_ops(a, c, fast):
    ops = []
    buf = (c & 1) * 4096
    for rg in range(4):
        r0 = xr(c, rg)
        for d in range(4):
            r = r0 + d; t0 = vT + 2 * (d & 1); t1 = t0 + 1
            ops.append(lambda r=r, t0=t0: a(f"v_lshlrev_b32 v{t0}, 16, v{r}"))
            ops.append(lambda r=r, t1=t1: a(f"v_and_b32 v{t1}, s{sMASK}, v{r}"))
            if fast:
                ops.append(lambda t0=t0, t1=t1, rg=rg: a(f"v_pk_fma_f32 v[{t0}:{t1}], v[{t0}:{t1}], v[{vRS+rg}:{vRS+rg+1}], v[{vNM+rg}:{vNM+rg+1}] op_sel_hi:[1,0,0]") if rg % 2 == 0 else
                           a(f"v_pk_fma_f32 v[{t0}:{t1}], v[{t0}:{t1}], v[{vRS+rg-1}:{vRS+rg}], v[{vNM+rg-1}:{vNM+rg}] op_sel:[0,1,1] op_sel_hi:[1,1,1]"))
            else:
                ops.append(lambda t0=t0, rg=rg: a(f"v_fma_f32 v{t0}, v{t0}, v{vRS+rg}, v{vNM+rg}"))
                ops.append(lambda t1=t1, rg=rg: a(f"v_fma_f32 v{t1}, v{t1}, v{vRS+rg}, v{vNM+rg}"))
            ops.append(lambda r=r, t0=t0, t1=t1: a(f"v_cvt_pk_bf16_f32 v{r}, v{t0}, v{t1}"))
        va = vSWo if rg & 1 else vSWe
        ops.append(lambda r0=r0, va=va, rg=rg: a.lds(f"ds_write_b128 v{va}, v[{r0}:{r0+3}] offset:{buf + rg*1024}", "shw"))
    for s in range(4):
        f = XF + 4 * (4 * c + s)
        ops.append(lambda f=f, s=s: a.lds(f"ds_read_b128 a[{f}:{f+3}], v{vSR+s} offset:{buf}", ("xf", 4 * c + s)))
    return ops

def gemm_phase(a, regions_tiles, chunks, R, slotsz, dma_plan, accs, side, budget=3, D=4, first_sync_done=True, nctr=[0]):
    items = []
    for (gid, kc) in chunks:
        for sp in range(4):
            for (Rg, T, acc) in regions_tiles:
                items.append((gid, kc, sp, Rg, T, acc))
    n = len(items); per = 4 * len(regions_tiles)
    issued = 0
    base_ctr = nctr[0]
    def issue_reads(upto, limit_gid):
        nonlocal issued
        while issued < min(upto, n) and items[issued][0] <= limit_gid:
            gid, kc, sp, Rg, T, acc = items[issued]
            slot = (base_ctr + issued) % NS
            off = (gid % R) * slotsz + Rg.off + (16 * sp) * Rg.stride + T * 64
            f = AFR + 4 * slot
            tr_read(a, Rg.stride, off, f"a[{f}:{f+1}]", ("af", base_ctr + issued))
            tr_read(a, Rg.stride, off + 4 * Rg.stride, f"a[{f+2}:{f+3}]", ("af", base_ctr + issued))
            issued += 1
    synced = chunks[0][0]
    issue_reads(D, synced)
    si = 0
    for i, (gid, kc, sp, Rg, T, acc) in enumerate(items):
        while si < len(side) and side[si][1] <= i:
            side[si][2](); si += 1
        slot = (base_ctr + i) % NS; f = AFR + 4 * slot; s = 4 * kc + sp; xf = XF + 4 * s
        a.wait_lg(("xf", s)); a.wait_lg(("af", base_ctr + i))
        csrc = "0" if (kc == 0 and sp == 0) else acc
        a(f"v_mfma_f32_32x32x16_bf16 {acc}, a[{f}:{f+3}], a[{xf}:{xf+3}], {csrc}")
        if (i % per) == per - 3 and i + 3 < n:
            nxt = items[i + 3][0]
            a.wait_lg(None)
            a.wait_vm(("w", nxt))
            a.barrier()
            synced = nxt
            dma_plan(gid + R)
        issue_reads(i + 1 + D, synced)
        b = 0
        while si < len(side) and b < budget and side[si][0] <= i:
            side[si][2](); si += 1; b += 1
    while si < len(side):
        side[si][2](); si += 1
    nctr[0] = base_ctr + n

def stats(a):
    for rg in range(4): a(f"v_mov_b32 v{vRS+rg}, 0\nv_mov_b32 v{vNM+rg}, 0")
    def chunk(c):
        a.wait_vm(("x", c))
        for d in range(4):
            for rg in range(4):
                r = xr(c, rg) + d
                a(f"v_dot2c_f32_bf16 v{vRS+rg}, s{sONES}, v{r}")
                a(f"v_dot2c_f32_bf16 v{vNM+rg}, v{r}, v{r}")
    return chunk

def stats_final(a):
    regs = [vRS + i for i in range(4)] + [vNM + i for i in range(4)]
    for mod in ("quad_perm:[1,0,3,2] row_mask:0xf bank_mask:0xf", "quad_perm:[2,3,0,1] row_mask:0xf bank_mask:0xf", "row_half_mirror row_mask:0xf bank_mask:0xf"):
        for r in regs: a(f"v_add_f32_dpp v{r}, v{r}, v{r} {mod}")
    inv = f2u(1.0 / 640)
    a(f"s_mov_b32 s60, {inv:#x}\ns_mov_b32 s61, {f2u(1e-5):#x}")
    for rg in range(4):
        S, Q = vRS + rg, vNM + rg; t = vT
        a(f"v_mul_f32 v{S}, s60, v{S}")
        a(f"v_mul_f32 v{Q}, s60, v{Q}")
        a(f"v_fma_f32 v{Q}, -v{S}, v{S}, v{Q}")
        a(f"v_max_f32 v{Q}, 0, v{Q}")
        a(f"v_cvt_pk_bf16_f32 v{t}, v{S}, v{Q}")
        a(f"v_lshlrev_b32 v{S}, 16, v{t}")
        a(f"v_and_b32 v{Q}, s{sMASK}, v{t}")
        a(f"v_add_f32 v{Q}, s61, v{Q}")
        a(f"v_cvt_pk_bf16_f32 v{t}, v{Q}, v{Q}")
        a(f"v_and_b32 v{Q}, s{sMASK}, v{t}")
        a(f"v_sqrt_f32 v{Q}, v{Q}")
        a(f"v_cvt_pk_bf16_f32 v{t}, v{Q}, v{Q}")
        a(f"v_and_b32 v{Q}, s{sMASK}, v{t}")
        a(f"v_rcp_f32 v{t}, v{Q}")
        a(f"v_mul_f32 v{Q}, v{S}, v{t}")
        a(f"v_sub_f32 v{Q}, 0, v{Q}")
        a(f"v_mov_b32 v{S}, v{t}")

def tj_issue(a):
    a(f"s_cmp_ge_u32 s{sTJ}, 592\ns_cbranch_scc1 L_tj1_skip_{a.uid}")
    a(f"s_lshr_b32 s60, s{sTJ}, 3\ns_and_b32 s61, s{sTJ}, 7")
    a("s_mov_b32 s63, 819200\ns_cmp_lt_u32 s60, 54")
    a(f"s_cselect_b32 s{ST}, s14, s10\ns_cselect_b32 s{ST+1}, s15, s11\ns_cselect_b32 s{ST+2}, 2211840, s63\ns_cselect_b32 s62, 0, 54")
    a(f"s_and_b32 s{ST+1}, s{ST+1}, 0xffff\ns_mov_b32 s{ST+3}, 0x20000")
    a("s_sub_u32 s60, s60, s62\ns_mul_i32 s60, s60, 40960\ns_mul_i32 s61, s61, 160\ns_add_u32 s60, s60, s61")
    a(f"s_lshl_b32 s61, s{sW}, 13")
    for i in range(5):
        a(f"v_add_u32 v28, {64*i}, v{vLANE}")
        vdivmod(a, 29, 30, 28, 10, 64 * i + 63)
        a("v_mul_u32_u24 v29, 1280, v29\nv_lshl_add_u32 v29, v30, 4, v29")
        a(f"s_add_u32 m0, s61, {SHUF + i*1024}")
        a.vmem(f"buffer_load_dwordx4 v29, s[{ST}:{ST+3}], s60 offen lds", "tj", optional=True)
    a.label(f"L_tj1_skip_{a.uid}")

def tj_finish(a, tmp):
    a(f"s_cmp_ge_u32 s{sTJ}, 592\ns_cbranch_scc1 L_tj2_skip_{a.uid}")
    lg_save = list(a.lg); vm_save = list(a.vm)
    a.wait_vm("tj")
    a(f"v_lshrrev_b32 v28, 4, v{vLANE}\nv_bfe_u32 v29, v{vLANE}, 2, 2\nv_lshl_add_u32 v28, v28, 3, v29\nv_mul_u32_u24 v28, 160, v28\nv_and_b32 v29, 3, v{vLANE}\nv_mul_u32_u24 v29, 40, v29\nv_add_u32 v28, v28, v29")
    a(f"s_lshl_b32 s61, s{sW}, 13\ns_add_u32 s61, s61, {SHUF}\nv_add_u32 v28, s61, v28")
    for t in range(5):
        a(f"ds_read_b64_tr_b16 v[{tmp+4*t}:{tmp+4*t+1}], v28 offset:{8*t}")
        a(f"ds_read_b64_tr_b16 v[{tmp+4*t+2}:{tmp+4*t+3}], v28 offset:{8*t+640}")
    a(f"s_lshr_b32 s60, s{sTJ}, 3\ns_and_b32 s61, s{sTJ}, 7\ns_mul_i32 s61, s61, 74\ns_add_u32 s60, s60, s61\ns_mul_i32 s60, s60, 5120\ns_add_u32 s60, s60, {WS_WF}")
    a(f"v_lshlrev_b32 v29, 4, v{vLANE}\nv_add_u32 v30, 4096, v29")
    a("s_waitcnt lgkmcnt(0)")
    for t in range(5):
        if t < 4: a.vmem(f"buffer_store_dwordx4 v[{tmp+4*t}:{tmp+4*t+3}], v29, s[{SW}:{SW+3}], s60 offen offset:{t*1024}", "tjs", optional=True)
        else: a.vmem(f"buffer_store_dwordx4 v[{tmp+4*t}:{tmp+4*t+3}], v30, s[{SW}:{SW+3}], s60 offen", "tjs", optional=True)
    a.label(f"L_tj2_skip_{a.uid}")
    a.lg = lg_save
    a.vm = vm_save + [("tjs", True)] * 5

def phi_zero(a):
    a(f"v_mov_b32 v28, 0\nv_mov_b32 v29, 0\nv_mov_b32 v30, 0\nv_mov_b32 v31, 0")
    a(f"v_lshlrev_b32 v{vNM}, 4, v0\nv_add_u32 v{vNM}, {PHI}, v{vNM}")
    for i in range(3): a.lds(f"ds_write_b128 v{vNM}, v[28:31] offset:{i*4096}", "phz")

def phi_load(a, tmp):
    a(f"s_lshl_b32 s60, s{sHG}, 2\ns_add_u32 s60, s60, s{sW}\ns_mul_i32 s60, s60, 800")
    a(f"v_lshlrev_b32 v28, 3, v{vLANE}")
    a.vmem(f"buffer_load_dwordx2 v[{tmp}:{tmp+1}], v28, s[{SP}:{SP+3}], s60 offen", "phl")
    a.vmem(f"buffer_load_dwordx2 v[{tmp+2}:{tmp+3}], v28, s[{SP}:{SP+3}], s60 offen offset:512", "phl")

def phi_scatter(a, tmp, t2):
    a.wait_vm("phl")
    A, B, C, Dd, E, F = range(t2, t2 + 6)
    a(f"s_lshr_b32 s60, s{sW}, 1\ns_and_b32 s61, s{sW}, 1\ns_mul_i32 s62, s61, 5")
    for rnd in range(2):
        a(f"v_add_u32 v{A}, {64*rnd}, v{vLANE}")
        vdivmod(a, B, C, A, 5, 127)
        a(f"v_lshrrev_b32 v{Dd}, 2, v{B}\nv_add_u32 v{Dd}, s62, v{Dd}")
        a(f"v_and_b32 v{E}, 1, v{Dd}\nv_lshlrev_b32 v{E}, 2, v{E}\nv_and_b32 v{B}, 3, v{B}\nv_add_u32 v{E}, v{E}, v{B}")
        a(f"v_lshrrev_b32 v{Dd}, 1, v{Dd}")
        a(f"v_cmp_gt_u32 vcc, 4, v{C}")
        a(f"v_mov_b32 v{B}, 6\nv_mov_b32 v{F}, s61\nv_cndmask_b32 v{B}, v{B}, v{F}, vcc\nv_add_u32 v{Dd}, v{Dd}, v{B}")
        a(f"v_cndmask_b32 v{C}, v{F}, v{C}, vcc")
        a(f"v_lshlrev_b32 v{Dd}, 10, v{Dd}\nv_lshl_add_u32 v{Dd}, v{C}, 7, v{Dd}\nv_lshl_add_u32 v{Dd}, v{E}, 1, v{Dd}")
        a(f"s_mul_i32 s63, s60, 576\ns_add_u32 s63, s63, {PHI}\nv_add_u32 v{Dd}, s63, v{Dd}")
        if rnd == 1:
            a(f"v_cmp_gt_u32 vcc, 100, v{A}\nv_mov_b32 v{B}, {PHI+11520}\nv_cndmask_b32 v{Dd}, v{B}, v{Dd}, vcc")
        r = tmp + 2 * rnd
        a.lds(f"ds_write_b16 v{Dd}, v{r}", "phs")
        a.lds(f"ds_write_b16_d16_hi v{Dd}, v{r} offset:16", "phs")
        a.lds(f"ds_write_b16 v{Dd}, v{r+1} offset:32", "phs")
        a.lds(f"ds_write_b16_d16_hi v{Dd}, v{r+1} offset:48", "phs")

def accreg(T, typ):
    if T < 4: return ACC0 + 16 * T
    return XR + 16 * (T - 4)

def pack_quads(a, accs, Q0, nq, dst):
    for i in range(nq):
        Q = Q0 + i; r = accs[Q >> 2] + 4 * (Q & 3)
        a(f"v_cvt_pk_bf16_f32 v{dst+2*i}, v{r}, v{r+1}")
        a(f"v_cvt_pk_bf16_f32 v{dst+2*i+1}, v{r+2}, v{r+3}")

def phi_project(a, KP, O, FR, vL16):
    for i in range(11): a.lds(f"ds_read_b128 v[{FR+4*i}:{FR+4*i+3}], v{vL16} offset:{i*1024}", ("pf", i))
    plan = [(0, b, b) for b in range(3)] + [(1, b, 1 + b) for b in range(2, 5)] + [(2, b, 6 + b) for b in range(5)]
    first = set()
    for (o, b, fi) in plan:
        a.wait_lg(("pf", fi))
        acc = f"v[{O+16*o}:{O+16*o+15}]"
        c = acc if o in first else "0"; first.add(o)
        a(f"v_mfma_f32_32x32x16_bf16 {acc}, v[{FR+4*fi}:{FR+4*fi+3}], v[{KP+4*b}:{KP+4*b+3}], {c}")

def softmax2(a, pairs, ROW, E, tmp):
    P = [r + i for r in pairs for i in range(2)]
    mx, mn, sp, sn = tmp, tmp + 1, tmp + 2, tmp + 4
    a(f"v_max3_f32 v{mx}, v{P[0]}, v{P[1]}, v{P[2]}\nv_min3_f32 v{mn}, v{P[0]}, v{P[1]}, v{P[2]}")
    for i in range(3, 19, 2):
        a(f"v_max3_f32 v{mx}, v{mx}, v{P[i]}, v{P[i+1]}\nv_min3_f32 v{mn}, v{mn}, v{P[i]}, v{P[i+1]}")
    a(f"v_max_f32 v{mx}, v{mx}, v{P[19]}\nv_min_f32 v{mn}, v{mn}, v{P[19]}")
    a(f"v_mul_f32 v{mx}, s{sNC}, v{mx}\nv_mul_f32 v{mn}, s{sC}, v{mn}")
    for i, r in enumerate(pairs):
        a(f"v_pk_fma_f32 v[{E+2*i}:{E+2*i+1}], v[{r}:{r+1}], s[{sC}:{sC+1}], v[{mx}:{mx+1}] op_sel_hi:[1,1,0]")
        a(f"v_pk_fma_f32 v[{E+20+2*i}:{E+20+2*i+1}], v[{r}:{r+1}], s[{sNC}:{sNC+1}], v[{mx}:{mx+1}] op_sel:[0,0,1] op_sel_hi:[1,1,1]")
    for i in range(40): a(f"v_exp_f32 v{E+i}, v{E+i}")
    a(f"v_pk_add_f32 v[{sp}:{sp+1}], v[{E}:{E+1}], v[{E+2}:{E+3}]\nv_pk_add_f32 v[{sn}:{sn+1}], v[{E+20}:{E+21}], v[{E+22}:{E+23}]")
    for i in range(2, 10):
        a(f"v_pk_add_f32 v[{sp}:{sp+1}], v[{sp}:{sp+1}], v[{E+2*i}:{E+2*i+1}]\nv_pk_add_f32 v[{sn}:{sn+1}], v[{sn}:{sn+1}], v[{E+20+2*i}:{E+20+2*i+1}]")
    a(f"v_add_f32 v{sp}, v{sp}, v{sp+1}\nv_add_f32 v{sn}, v{sn}, v{sn+1}")
    a(f"v_rcp_f32 v{sp}, v{sp}\nv_rcp_f32 v{sn}, v{sn}")
    for i in range(10):
        a(f"v_pk_mul_f32 v[{E+2*i}:{E+2*i+1}], v[{E+2*i}:{E+2*i+1}], v[{sp}:{sp+1}] op_sel_hi:[1,0]")
        a(f"v_pk_mul_f32 v[{E+20+2*i}:{E+20+2*i+1}], v[{E+20+2*i}:{E+20+2*i+1}], v[{sn}:{sn+1}] op_sel_hi:[1,0]")
    for i in range(20): a(f"v_cvt_pk_bf16_f32 v{ROW+i}, v{E+2*i}, v{E+2*i+1}")

def silu_store(a, acc, tile_sreg_expr, vHO, E, PK):
    for i in range(8): a(f"v_pk_mul_f32 v[{E+2*i}:{E+2*i+1}], v[{acc+2*i}:{acc+2*i+1}], s[{sNC}:{sNC+1}]")
    for i in range(16): a(f"v_exp_f32 v{E+i}, v{E+i}")
    for i in range(8): a(f"v_pk_add_f32 v[{E+2*i}:{E+2*i+1}], v[{E+2*i}:{E+2*i+1}], s[{sONE2}:{sONE2+1}]")
    for i in range(16): a(f"v_rcp_f32 v{E+i}, v{E+i}")
    for i in range(8): a(f"v_pk_mul_f32 v[{E+2*i}:{E+2*i+1}], v[{E+2*i}:{E+2*i+1}], v[{acc+2*i}:{acc+2*i+1}]")
    for i in range(8): a(f"v_cvt_pk_bf16_f32 v{PK+i}, v{E+2*i}, v{E+2*i+1}")
    a.vmem(f"buffer_store_dwordx4 v[{PK}:{PK+3}], v{vHO}, s[{SW}:{SW+3}], {tile_sreg_expr} offen", "hst")
    a.vmem(f"buffer_store_dwordx4 v[{PK+4}:{PK+7}], v{vHO}, s[{SW}:{SW+3}], {tile_sreg_expr} offen offset:256", "hst")

def h_lane_off(a, d):
    a(f"v_and_b32 v28, 15, v{vLANE}\nv_bfe_u32 v29, v{vLANE}, 4, 1\nv_lshrrev_b32 v30, 5, v{vLANE}")
    a(f"v_lshlrev_b32 v{d}, 4, v28\nv_lshl_add_u32 v{d}, v29, 10, v{d}\nv_lshl_add_u32 v{d}, v30, 9, v{d}")
    a(f"s_and_b32 s60, s{sW}, 1\ns_lshl_b32 s60, s60, 11\nv_add_u32 v{d}, s60, v{d}")

def gen_type(a, typ):
    a.uid = typ
    nctr = [0]
    if typ == "A":
        a(f"s_mul_i32 s{sW1T}, s{sHG}, 3\ns_add_u32 s{sW1T}, s{sW1T}, 32\ns_min_u32 s{sW1T}, s{sW1T}, 51")
        Rkv = Region("kv", 0, sR0); Rw = Region("w3", 0, sR1)
        dma_voffsets(a, "kv"); dma_voffsets(a, "w3")
        R = 4; slotsz = 20480; lead = 2
        def dma_plan(g):
            if g < 10: dma_chunk(a, [Rkv], (g % R) * slotsz, ("w", g))
            elif g < 20: dma_chunk(a, [Rw], (g % R) * slotsz, ("w", g))
        a(f"s_mul_i32 s{sR0}, s{sW}, {16*3840}\ns_mul_i32 s{sR1}, s{sW}, {16*3456}")
    else:
        a(f"s_lshl_b32 s{sW1T}, s{sHG}, 2")
        Rq = Region("q", 0, sR0); Rw = Region("w4", 12288, sR1)
        dma_voffsets(a, "q"); dma_voffsets(a, "w4")
        R = 3; slotsz = 32768; lead = 3
        def dma_plan(g):
            if g < 10: dma_chunk(a, [Rq, Rw], (g % R) * slotsz, ("w", g))
        a(f"s_mul_i32 s{sR0}, s{sW}, {16*3840}\ns_mul_i32 s{sR1}, s{sW}, {16*3456}")
    dma_plan(0)
    tj_issue(a)
    phi_load(a, ACC0)
    ch = stats(a)
    phi_zero_done = False
    if typ == "A":
        a(f"s_cmp_lg_u32 s{sMB}, 0\ns_cbranch_scc1 L_zskip")
        a("v_mov_b32 v28, 0\nv_mov_b32 v29, 0\nv_mov_b32 v30, 0\nv_mov_b32 v31, 0")
        a(f"s_mul_i32 s60, s{sHG}, 13440")
        a(f"v_lshlrev_b32 v{ACC0+8}, 4, v0")
        a(f"v_add_u32 v{ACC0+9}, 12288, v{ACC0+8}\nv_mov_b32 v{ACC0+10}, {OOB:#x}\nv_cmp_gt_u32 vcc, 72, v0\nv_cndmask_b32 v{ACC0+9}, v{ACC0+10}, v{ACC0+9}, vcc")
        a(f"v_add_u32 v{ACC0+10}, 4096, v{ACC0+8}\nv_add_u32 v{ACC0+11}, 8192, v{ACC0+8}")
        for r in (8, 10, 11, 9):
            a.vmem(f"buffer_store_dwordx4 v[28:31], v{ACC0+r}, s[{SW}:{SW+3}], s60 offen sc1", "zst", optional=True)
        a.label("L_zskip")
    for c in range(10):
        ch(c)
        if c == 1: dma_plan(1)
        if c == 3 and R > 2: dma_plan(2)
        if c == 5 and R > 3: dma_plan(3)
    stats_final(a)
    a(f"v_mov_b32 v{ACC0+12}, 0\nv_mov_b32 v{ACC0+13}, 0\nv_mov_b32 v{ACC0+14}, 0\nv_mov_b32 v{ACC0+15}, 0")
    a(f"v_lshlrev_b32 v{ACC0+16}, 4, v0\nv_add_u32 v{ACC0+16}, {PHI}, v{ACC0+16}")
    for i in range(3): a.lds(f"ds_write_b128 v{ACC0+16}, v[{ACC0+12}:{ACC0+15}] offset:{i*4096}", "phz")
    tj_finish(a, ACC0 + 20)
    if typ == "A": a.wait_vm("zst")
    for c in range(lead):
        for f in norm_ops(a, c, True): f()
    a.wait_lg(None); a.wait_vm(("w", 0)); a.barrier()
    phi_scatter(a, ACC0, ACC0 + 4)
    if typ == "A":
        a(f"s_cmp_lg_u32 s{sMB}, 0\ns_cbranch_scc1 L_zf_skip\ns_cmp_lg_u32 s{sW}, 0\ns_cbranch_scc1 L_zf_skip")
        a(f"v_mov_b32 v28, 1\nv_mov_b32 v29, 0\ns_lshl_b32 s60, s{sHG}, 2")
        a.vmem(f"buffer_store_dword v28, v29, s[{SD}:{SD+3}], s60 offen sc1", "zf", optional=True)
        a.label("L_zf_skip")
    a.wait_lg(None)
    nt = 5 if typ == "A" else 7
    side = []
    for c in range(lead, 10):
        ops = norm_ops(a, c, False)
        dl = (c * 4 * nt) - 2 * nt
        for f in ops: side.append((0, dl, f))
    if typ == "A":
        accs = [accreg(T, typ) for T in range(5)]
        rt = [(Rkv, T, f"v[{accs[T]}:{accs[T]+15}]") for T in range(5)]
        gemm_phase(a, rt, [(g, g) for g in range(10)], R, slotsz, dma_plan, accs, side, nctr=nctr)
        epilogue_kv(a, accs)
        accs2 = [ACC0, ACC0 + 16, ACC0 + 32]
        rt = [(Rw, T, f"v[{accs2[T]}:{accs2[T]+15}]") for T in range(3)]
        a.wait_lg(None); a.wait_vm(("w", 10)); a.barrier(); dma_plan(9 + R)
        def done_flag():
            a(f"s_cmp_lg_u32 s{sW}, 0\ns_cbranch_scc1 L_df_skip")
            a(f"v_mov_b32 v28, 1\nv_mov_b32 v29, 0\ns_lshl_b32 s60, s{sHG}, 4\ns_add_u32 s60, s60, s{sMB}")
            a.vmem(f"buffer_store_byte v28, v29, s[{SD}:{SD+3}], s60 offen offset:128 sc1", "df", optional=True)
            a.label("L_df_skip")
        side2 = [(34, 36, done_flag)]
        gemm_phase(a, rt, [(10 + g, g) for g in range(10)], R, slotsz, dma_plan, accs2, side2, nctr=nctr)
        vHO = 96; h_lane_off(a, vHO)
        for T in range(3):
            a(f"s_add_u32 s62, s{sW1T}, {T}\ns_lshl_b32 s62, s62, 12\ns_add_u32 s62, s62, s{sAFO}")
            silu_store(a, accs2[T], "s62", vHO, 112, 128 + 8 * T)
    else:
        accs = [accreg(T, typ) for T in range(7)]
        rt = [(Rq, T, f"v[{accs[T]}:{accs[T]+15}]") for T in range(3)] + [(Rw, T, f"v[{accs[3+T]}:{accs[3+T]+15}]") for T in range(4)]
        gemm_phase(a, rt, [(g, g) for g in range(10)], R, slotsz, dma_plan, accs, side, nctr=nctr)
        epilogue_B(a, accs)

def epilogue_kv(a, accs):
    KP = 112
    ROW = [132, 164]
    O = 196
    FR = 0
    vL16 = 244; E = 32; TMP = 72
    a(f"v_lshlrev_b32 v{vL16}, 4, v{vLANE}\nv_add_u32 v{vL16}, {PHI}, v{vL16}")
    pack_quads(a, accs, 0, 10, KP)
    pack_quads(a, accs, 10, 5, ROW[0] + 20)
    pack_quads(a, accs, 15, 5, ROW[1] + 20)
    for h in range(2): a(f"v_mov_b32 v{ROW[h]+30}, 0x3f80\nv_mov_b32 v{ROW[h]+31}, 0")
    phi_project(a, KP, O, 32, vL16)
    softmax2(a, [O + 2 * i for i in range(8)] + [O + 32, O + 34], ROW[0], E, TMP)
    softmax2(a, [O + 16 + 2 * i for i in range(8)] + [O + 36, O + 38], ROW[1], E, TMP)
    A0 = 80
    a(f"v_and_b32 v28, 31, v{vLANE}\nv_lshrrev_b32 v29, 5, v{vLANE}")
    a(f"v_bfe_u32 v30, v28, 1, 1\nv_lshlrev_b32 v30, 2, v30\nv_bfe_u32 v31, v28, 2, 1\nv_lshl_add_u32 v30, v31, 1, v30\nv_and_b32 v31, 1, v28\nv_add_u32 v30, v30, v31")
    a(f"v_lshlrev_b32 v{A0}, 4, v30\nv_lshl_add_u32 v{A0}, v28, 7, v{A0}\nv_lshl_add_u32 v{A0}, v29, 15, v{A0}")
    a(f"s_lshl_b32 s60, s{sW}, 12\ns_add_u32 s60, s60, {STAGE}\nv_add_u32 v{A0}, s60, v{A0}")
    for p in range(1, 8): a(f"v_xor_b32 v{A0+p}, {p*16}, v{A0}")
    for h in range(2):
        for p in range(8):
            a.lds(f"ds_write_b128 v{A0+p}, v[{ROW[h]+4*p}:{ROW[h]+4*p+3}] offset:{h*16384}", "stg")
    a(f"s_lshl_b32 s61, s{sHG}, 2\nv_mov_b32 v29, 0")
    a.label("L_zpoll")
    a(f"buffer_load_dword v28, v29, s[{SD}:{SD+3}], s61 offen sc1")
    a("s_waitcnt vmcnt(0)"); a.vm = []
    a("v_readfirstlane_b32 s60, v28\ns_cmp_eq_u32 s60, 1\ns_cbranch_scc1 L_zok\ns_sleep 4\ns_branch L_zpoll")
    a.label("L_zok")
    RA = 88
    a(f"v_bfe_u32 v28, v{vLANE}, 2, 2")
    a(f"v_lshrrev_b32 v29, 1, v28\nv_lshlrev_b32 v29, 2, v29")
    a(f"v_bfe_u32 v30, v{vLANE}, 4, 1\nv_lshl_add_u32 v29, v30, 1, v29")
    a(f"v_bfe_u32 v30, v{vLANE}, 1, 1\nv_and_b32 v31, 1, v28\nv_xor_b32 v30, v30, v31\nv_add_u32 v29, v29, v30")
    a(f"v_lshlrev_b32 v{RA}, 4, v29\nv_and_b32 v30, 1, v{vLANE}\nv_lshl_add_u32 v{RA}, v30, 3, v{RA}")
    a(f"v_lshrrev_b32 v30, 5, v{vLANE}\nv_lshl_add_u32 v30, v30, 3, v28\nv_lshl_add_u32 v{RA}, v30, 7, v{RA}")
    a(f"s_lshl_b32 s60, s{sW}, 14\ns_add_u32 s60, s60, {STAGE}\nv_add_u32 v{RA}, s60, v{RA}")
    a(f"v_xor_b32 v{RA+1}, 32, v{RA}\nv_add_u32 v{RA+1}, 512, v{RA+1}\nv_xor_b32 v{RA+2}, 64, v{RA}\nv_xor_b32 v{RA+3}, 64, v{RA+1}")
    a.wait_lg(None); a.barrier()
    F = 112
    D0 = 176; D1 = 192
    for sg in range(8):
        for sh in range(2):
            f = F + 8 * sg + 4 * sh
            a.lds(f"ds_read_b64_tr_b16 v[{f}:{f+1}], v{RA+2*sh} offset:{sg*2048}", ("kf", sg))
            a.lds(f"ds_read_b64_tr_b16 v[{f+2}:{f+3}], v{RA+2*sh+1} offset:{sg*2048}", ("kf", sg))
        if sg >= 2:
            s2 = sg - 2; f = F + 8 * s2
            a.wait_lg(("kf", s2))
            a(f"v_mfma_f32_32x32x16_bf16 v[{D0}:{D0+15}], v[{f+4}:{f+7}], v[{f}:{f+3}], {'0' if s2==0 else f'v[{D0}:{D0+15}]'}")
            a(f"v_mfma_f32_32x32x16_bf16 v[{D1}:{D1+15}], v[{f+4}:{f+7}], v[{f+4}:{f+7}], {'0' if s2==0 else f'v[{D1}:{D1+15}]'}")
    for s2 in (6, 7):
        f = F + 8 * s2
        a.wait_lg(("kf", s2))
        a(f"v_mfma_f32_32x32x16_bf16 v[{D0}:{D0+15}], v[{f+4}:{f+7}], v[{f}:{f+3}], v[{D0}:{D0+15}]")
        a(f"v_mfma_f32_32x32x16_bf16 v[{D1}:{D1+15}], v[{f+4}:{f+7}], v[{f+4}:{f+7}], v[{D1}:{D1+15}]")
    AO = 80
    a(f"v_and_b32 v28, 31, v{vLANE}\nv_lshrrev_b32 v29, 5, v{vLANE}\nv_mul_u32_u24 v30, 640, v29\nv_lshl_add_u32 v{AO}, v28, 2, v30")
    a(f"v_mov_b32 v31, {OOB:#x}\nv_cmp_eq_u32 vcc, 0, v29\nv_cndmask_b32 v{AO+1}, v31, v{AO}, vcc")
    a(f"v_add_u32 v{AO+2}, 128, v{AO}\nv_cmp_gt_u32 vcc, 8, v28\nv_cndmask_b32 v{AO+2}, v31, v{AO+2}, vcc")
    a(f"v_cmp_gt_u32 vcc, 8, v{vLANE}\nv_cndmask_b32 v{AO+3}, v31, v{AO+2}, vcc")
    a(f"s_lshl_b32 s60, s{sHG}, 2\ns_add_u32 s60, s60, s{sW}\ns_mul_i32 s60, s60, 3360")
    for (D, ao) in ((D0, AO), (D1, AO + 2)):
        for r in range(4, 16):
            off = ((r & 3) + 8 * (r >> 2) - 8) * 160
            v = ao + (1 if r >= 13 else 0)
            a.vmem(f"buffer_atomic_add_f32 v{D+r}, v{v}, s[{SW}:{SW+3}], s60 offen offset:{off}", "atm")

def epilogue_B(a, accs):
    vHO = 144; h_lane_off(a, vHO)
    for T in range(4):
        a(f"s_add_u32 s62, s{sW1T}, {T}\ns_lshl_b32 s62, s62, 12\ns_add_u32 s62, s62, s{sAFO}")
        silu_store(a, accs[3 + T], "s62", vHO, 148, 164 + 8 * T)
    KP = 80; O = 100; vL16 = 240; PQ = [196, 216]; E = 32; TMP = 72
    a(f"v_lshlrev_b32 v{vL16}, 4, v{vLANE}\nv_add_u32 v{vL16+1}, {OA}, v{vL16}\nv_add_u32 v{vL16}, {PHI}, v{vL16}")
    pack_quads(a, accs, 0, 10, KP)
    phi_project(a, KP, O, 32, vL16)
    softmax2(a, [O + 2 * i for i in range(8)] + [O + 32, O + 34], PQ[0], E, TMP)
    softmax2(a, [O + 16 + 2 * i for i in range(8)] + [O + 36, O + 38], PQ[1], E, TMP)
    a(f"s_lshl_b32 s61, s{sHG}, 4\nv_mov_b32 v28, 0\ns_mov_b32 s62, 0x01010101")
    a.label("L_dpoll")
    a(f"buffer_load_dwordx4 v[32:35], v28, s[{SD}:{SD+3}], s61 offen offset:128 sc1")
    a("s_waitcnt vmcnt(0)"); a.vm = []
    a("v_and_b32 v32, v32, v33\nv_and_b32 v34, v34, v35\nv_and_b32 v32, v32, v34")
    a("v_readfirstlane_b32 s60, v32\ns_cmp_eq_u32 s60, s62\ns_cbranch_scc1 L_dok\ns_sleep 2\ns_branch L_dpoll")
    a.label("L_dok")
    a(f"v_lshrrev_b32 v28, 5, v{vLANE}\nv_bfe_u32 v29, v{vLANE}, 2, 1\nv_bfe_u32 v30, v{vLANE}, 3, 2\nv_and_b32 v31, 3, v{vLANE}")
    a(f"s_and_b32 s60, s{sW}, 1")
    a(f"v_lshl_add_u32 v32, v30, 2, v31")
    a(f"v_add_u32 v33, 16, v31\nv_mov_b32 v34, 20\nv_mov_b32 v35, 0x10000")
    a(f"v_cmp_eq_u32 vcc, s60, v30\nv_cndmask_b32 v35, v35, v33, vcc")
    a(f"s_add_u32 s63, s60, 2\nv_cmp_eq_u32 vcc, s63, v30\nv_cndmask_b32 v35, v35, v34, vcc")
    a(f"s_cmp_lt_u32 s{sW}, 2\ns_cselect_b64 vcc, -1, 0\nv_cndmask_b32 v32, v35, v32, vcc")
    a(f"v_mul_u32_u24 v32, 160, v32\nv_mul_u32_u24 v33, 6720, v28\nv_add_u32 v32, v32, v33")
    a(f"v_mov_b32 v34, {OOB:#x}\nv_cmp_eq_u32 vcc, v28, v29\nv_cndmask_b32 v32, v34, v32, vcc")
    a(f"v_mov_b32 v33, 0x100000\nv_cmp_gt_u32 vcc, v33, v32\nv_cndmask_b32 v32, v34, v32, vcc")
    a(f"s_lshl_b32 s63, s{sHG}, 2\ns_add_u32 s63, s63, s60\ns_mul_i32 s63, s63, 3360")
    L = 36
    for b in range(5):
        a.vmem(f"buffer_load_dwordx4 v[{L+8*b}:{L+8*b+3}], v32, s[{SW}:{SW+3}], s63 offen offset:{32*b} sc1", ("kvl", b))
        a.vmem(f"buffer_load_dwordx4 v[{L+8*b+4}:{L+8*b+7}], v32, s[{SW}:{SW+3}], s63 offen offset:{32*b+16} sc1", ("kvl", b))
    a(f"s_mul_i32 s60, s{sW}, 5120\nv_add_u32 v33, s60, v{vL16+1}")
    PKF = 80
    for b in range(5):
        a.wait_vm(("kvl", b))
        for i in range(4): a(f"v_cvt_pk_bf16_f32 v{PKF+4*b+i}, v{L+8*b+2*i}, v{L+8*b+2*i+1}")
        a.lds(f"ds_write_b128 v33, v[{PKF+4*b}:{PKF+4*b+3}] offset:{b*1024}", "oaw")
    a.wait_lg(None); a.barrier()
    FR = 100
    P = [32, 48, 64]
    order = [(0, 0, b) for b in range(5)] + [(1, 1, b) for b in range(5)] + [(2, 0, b) for b in range(5)] + [(2, 1, b) for b in range(5)]
    def rd(i): a.lds(f"ds_read_b128 v[{FR+4*i}:{FR+4*i+3}], v{vL16+1} offset:{i*1024}", ("of", i))
    for i in range(8): rd(i)
    first = set()
    for i, (p, hl, b) in enumerate(order):
        a.wait_lg(("of", i))
        acc = f"v[{P[p]}:{P[p]+15}]"; c = acc if p in first else "0"; first.add(p)
        a(f"v_mfma_f32_32x32x16_bf16 {acc}, v[{FR+4*i}:{FR+4*i+3}], v[{PQ[hl]+4*b}:{PQ[hl]+4*b+3}], {c}")
        if i + 8 < 20: rd(i + 8)
    a(f"s_mov_b32 s60, {f2u(1e-6):#x}")
    a(f"v_add_f32 v80, s60, v{P[2]+8}\nv_add_f32 v82, s60, v{P[2]+12}\nv_rcp_f32 v80, v80\nv_rcp_f32 v82, v82")
    OP = 84
    for hl in range(2):
        src = [P[hl] + 2 * i for i in range(8)] + [P[2] + 4 * hl, P[2] + 4 * hl + 2]
        for i, r in enumerate(src):
            a(f"v_pk_mul_f32 v[{r}:{r+1}], v[{r}:{r+1}], v[{80+2*hl}:{81+2*hl}] op_sel_hi:[1,0]")
        for i, r in enumerate(src):
            a(f"v_cvt_pk_bf16_f32 v{OP+10*hl+i}, v{r}, v{r+1}")
    a(f"v_and_b32 v28, 15, v{vLANE}\nv_bfe_u32 v29, v{vLANE}, 4, 1\nv_lshrrev_b32 v30, 5, v{vLANE}")
    a(f"v_lshlrev_b32 v104, 4, v28\nv_lshl_add_u32 v104, v29, 10, v104")
    a(f"s_and_b32 s60, s{sW}, 1\ns_lshl_b32 s60, s60, 11\nv_add_u32 v104, s60, v104")
    a(f"s_mul_i32 s60, s{sHG}, 10\nv_mul_u32_u24 v30, 5, v30\nv_add_u32 v30, s60, v30")
    a(f"s_add_u32 s62, s{sAFO}, {54*4096}")
    for u in range(5):
        a(f"v_add_u32 v28, {u}, v30\nv_lshrrev_b32 v29, 2, v28\nv_and_b32 v28, 3, v28\nv_lshl_add_u32 v{105+u}, v29, 12, v104\nv_lshl_add_u32 v{105+u}, v28, 8, v{105+u}")
        a.vmem(f"buffer_store_dwordx4 v[{OP+4*u}:{OP+4*u+3}], v{105+u}, s[{SW}:{SW+3}], s62 offen", "ost")

def gen_k2():
    a = Asm()
    a(f".globl {K2}\n.p2align 8\n.type {K2},@function\n{K2}:")
    a("s_cmp_ge_u32 s2, 256\ns_cbranch_scc1 L2_end")
    a("s_load_dwordx2 s[4:5], s[0:1], 0")
    a("s_load_dwordx2 s[6:7], s[0:1], 56")
    a("s_load_dwordx2 s[8:9], s[0:1], 72")
    a("s_getpc_b64 s[22:23]")
    a.label("L2_pc")
    a("v_and_b32 v1, 63, v0\nv_lshrrev_b32 v2, 6, v0\ns_and_b32 s30, s2, 7\ns_lshr_b32 s31, s2, 3")
    a("v_readfirstlane_b32 s32, v2")
    a("s_lshr_b32 s33, s31, 3\ns_lshl_b32 s34, s30, 2\ns_add_u32 s34, s34, s33")
    a("s_and_b32 s35, s31, 7")
    a("s_mov_b32 s24, s22\ns_and_b32 s25, s23, 0xffff\ns_mov_b32 s26, L_code_end-L2_pc\ns_mov_b32 s27, 0x20000")
    a("v_lshlrev_b32 v2, 4, v0")
    a.vmem("buffer_load_dwordx4 v[244:247], v2, s[24:27], 0 offen", "code")
    a.vmem("buffer_load_dwordx4 v[244:247], v2, s[24:27], 0 offen offset:4080", "code")
    a("v_lshlrev_b32 v2, 4, v1\nv_add_u32 v3, 4096, v2")
    a("s_mul_i32 s36, s32, 18")
    a(f"s_mul_i32 s37, s34, 74\ns_add_u32 s37, s37, s36\ns_lshl_b32 s37, s37, 12\ns_add_u32 s37, s37, {WS_AF}")
    a(f"s_mul_i32 s38, s35, 74\ns_add_u32 s38, s38, s36\ns_mul_i32 s38, s38, 5120\ns_add_u32 s38, s38, {WS_WF}")
    a("s_waitcnt lgkmcnt(0)")
    srd(a, 12, 4, 2621440); srd(a, 16, 6, 2621440); srd(a, 20, 8, WS_SZ)
    NST = 4; ST0 = 96
    ACC = 16
    def loads(i, opt=False):
        st = ST0 + 36 * (i % NST)
        for t in range(5):
            if t < 4: a.vmem(f"buffer_load_dwordx4 v[{st+4*t}:{st+4*t+3}], v2, s[20:23], s38 offen offset:{t*1024}", ("k", i), opt)
            else: a.vmem(f"buffer_load_dwordx4 v[{st+4*t}:{st+4*t+3}], v3, s[20:23], s38 offen", ("k", i), opt)
        for mt in range(4):
            a.vmem(f"buffer_load_dwordx4 v[{st+20+4*mt}:{st+20+4*mt+3}], v2, s[20:23], s37 offen offset:{mt*1024}", ("k", i), opt)
        a("s_add_u32 s37, s37, 4096\ns_add_u32 s38, s38, 5120")
    for i in range(NST - 1): loads(i)
    a("v_and_b32 v4, 15, v1\nv_lshrrev_b32 v5, 4, v1\nv_mul_u32_u24 v4, 1280, v4\nv_mul_u32_u24 v5, 40, v5\nv_add_u32 v4, v4, v5")
    a("s_lshl_b32 s39, s34, 2\ns_add_u32 s39, s39, s32\ns_mul_i32 s39, s39, 20480\ns_mul_i32 s40, s35, 160\ns_add_u32 s39, s39, s40")
    a.vmem("buffer_load_dwordx4 v[6:9], v4, s[12:15], s39 offen", "x")
    a.vmem("buffer_load_dwordx4 v[10:13], v4, s[12:15], s39 offen offset:16", "x")
    a.vmem("buffer_load_dwordx2 v[14:15], v4, s[12:15], s39 offen offset:32", "x")
    for i in range(20):
        if i == 18:
            a("s_cmp_lg_u32 s32, 3\ns_cbranch_scc1 L2_skip")
        nx = i + NST - 1
        if nx < 18: loads(nx)
        elif nx < 20:
            a(f"s_cmp_lg_u32 s32, 3\ns_cbranch_scc1 L2_ls{nx}")
            loads(nx, True)
            a.label(f"L2_ls{nx}")
        a.wait_vm(("k", i))
        st = ST0 + 36 * (i % NST)
        for mt in range(4):
            for t in range(5):
                acc = f"v[{ACC+20*mt+4*t}:{ACC+20*mt+4*t+3}]"
                a(f"v_mfma_f32_16x16x32_bf16 {acc}, v[{st+4*t}:{st+4*t+3}], v[{st+20+4*mt}:{st+20+4*mt+3}], {'0' if i==0 else acc}")
    a.label("L2_skip")
    a("s_nop 7\ns_nop 7")
    a("s_mul_i32 s40, s32, 20480\nv_add_u32 v5, s40, v2")
    for mt in range(4):
        for t in range(5):
            r = ACC + 20 * mt + 4 * t
            a.lds(f"ds_write_b128 v5, v[{r}:{r+3}] offset:{mt*5120+t*1024}", "ex")
    a("s_mul_i32 s40, s32, 5120\nv_add_u32 v5, s40, v2\nv_add_u32 v3, 40960, v5")
    a.wait_lg(None); a.barrier()
    Pp = 96
    for w in range(4):
        for t in range(5):
            r = Pp + 20 * w + 4 * t
            v, o = (5, w * 20480 + t * 1024) if w < 2 else (3, (w - 2) * 20480 + t * 1024)
            a.lds(f"ds_read_b128 v[{r}:{r+3}], v{v} offset:{o}", ("p", w))
        if w == 2: a.wait_lg(("p", 1))
    a("s_mov_b32 s41, 0xffff0000")
    a(f"s_mov_b32 s42, {LOG2E|0x80000000:#x}\ns_mov_b32 s43, {LOG2E|0x80000000:#x}\ns_mov_b32 s44, 1.0\ns_mov_b32 s45, 1.0")
    a.wait_lg(("p", 2))
    for i in range(10):
        a(f"v_pk_add_f32 v[{Pp+2*i}:{Pp+2*i+1}], v[{Pp+2*i}:{Pp+2*i+1}], v[{Pp+20+2*i}:{Pp+21+2*i}]")
    for i in range(10):
        a(f"v_pk_add_f32 v[{Pp+2*i}:{Pp+2*i+1}], v[{Pp+2*i}:{Pp+2*i+1}], v[{Pp+40+2*i}:{Pp+41+2*i}]")
    T = 16; G = 40; Sb = 64
    def rnd(src, dst):
        for i in range(10): a(f"v_cvt_pk_bf16_f32 v{T+i}, v{src+2*i}, v{src+2*i+1}")
        for i in range(10): a(f"v_lshlrev_b32 v{dst+2*i}, 16, v{T+i}\nv_and_b32 v{dst+2*i+1}, s41, v{T+i}")
    rnd(Pp, Pp)
    for i in range(10): a(f"v_pk_mul_f32 v[{G+2*i}:{G+2*i+1}], v[{Pp+2*i}:{Pp+2*i+1}], s[42:43]")
    for i in range(20): a(f"v_exp_f32 v{G+i}, v{G+i}")
    for i in range(10): a(f"v_pk_add_f32 v[{G+2*i}:{G+2*i+1}], v[{G+2*i}:{G+2*i+1}], s[44:45]")
    for i in range(20): a(f"v_rcp_f32 v{G+i}, v{G+i}")
    for i in range(10): a(f"v_pk_mul_f32 v[{G+2*i}:{G+2*i+1}], v[{G+2*i}:{G+2*i+1}], v[{Pp+2*i}:{Pp+2*i+1}]")
    rnd(G, G)
    a.wait_lg(None)
    rnd(Pp + 60, Sb)
    for i in range(10): a(f"v_pk_mul_f32 v[{G+2*i}:{G+2*i+1}], v[{G+2*i}:{G+2*i+1}], v[{Sb+2*i}:{Sb+2*i+1}]")
    rnd(G, G)
    a.wait_vm("x")
    for i in range(10): a(f"v_lshlrev_b32 v{Sb+2*i}, 16, v{6+i}\nv_and_b32 v{Sb+2*i+1}, s41, v{6+i}")
    for i in range(10): a(f"v_pk_add_f32 v[{G+2*i}:{G+2*i+1}], v[{G+2*i}:{G+2*i+1}], v[{Sb+2*i}:{Sb+2*i+1}]")
    for i in range(10): a(f"v_cvt_pk_bf16_f32 v{T+i}, v{G+2*i}, v{G+2*i+1}")
    a.vmem(f"buffer_store_dwordx4 v[{T}:{T+3}], v4, s[16:19], s39 offen", "o")
    a.vmem(f"buffer_store_dwordx4 v[{T+4}:{T+7}], v4, s[16:19], s39 offen offset:16", "o")
    a.vmem(f"buffer_store_dwordx2 v[{T+8}:{T+9}], v4, s[16:19], s39 offen offset:32", "o")
    a.label("L2_end")
    a("s_endpgm")
    return a

def desc(name, vgpr, accum, sgpr):
    return f""".amdhsa_kernel {name}
  .amdhsa_next_free_vgpr {vgpr}
  .amdhsa_next_free_sgpr {sgpr}
  .amdhsa_accum_offset {accum}
  .amdhsa_group_segment_fixed_size 0
  .amdhsa_kernarg_size 80
  .amdhsa_user_sgpr_count 2
  .amdhsa_user_sgpr_kernarg_segment_ptr 1
  .amdhsa_system_sgpr_workgroup_id_x 1
.end_amdhsa_kernel
"""

def main(out):
    hdr = open(f"cdna_kernels/{NAME}.s.ref").read().split("; Override launch")[0]
    k1 = gen_k1(); k1.fix_hazards()
    k2 = gen_k2(); k2.fix_hazards()
    s = hdr
    s += f"; @launch kernel={K1} grid=(256,1,1) block=(256,1,1) lds=163840\n"
    s += f"; @launch kernel={K2} grid=(256,1,1) block=(256,1,1) lds=81920\n"
    s += '.amdgcn_target "amdgcn-amd-amdhsa--gfx950"\n.text\n'
    s += k1.text() + k2.text() + "L_code_end:\n"
    s += '.section .rodata,"a"\n.p2align 6\n' + desc(K1, 512, 256, 102) + ".p2align 6\n" + desc(K2, 256, 256, 64)
    open(out, "w").write(s)

if __name__ == "__main__":
    main(sys.argv[1] if len(sys.argv) > 1 else f"cdna_kernels/{NAME}.s")
```
